```python
import torch

def _softmax(x, axis=-1):
    return torch.softmax(x, dim=axis)
def _gelu(x):
    return torch.nn.functional.gelu(x, approximate="tanh")
def _silu(x):
    return torch.nn.functional.silu(x)
def _sigmoid(x):
    return torch.sigmoid(x)
def _layernorm(x, axis=-1, eps=1e-5):
    m = x.mean(dim=axis, keepdim=True)
    v = x.var(dim=axis, keepdim=True, unbiased=False)
    return (x - m) / torch.sqrt(v + eps)
def _scatter_add(tgt, idx, src, axis=0):
    return tgt.clone().index_add_(axis, idx, src)
def _segment_sum(src, seg, n):
    out = torch.zeros((n,) + src.shape[1:], dtype=src.dtype)
    return out.index_add_(0, seg, src)
def _pad(x, pw):
    flat = tuple(v for pair in reversed(pw) for v in pair)
    return torch.nn.functional.pad(x, flat)

kernel_name = 'interleave_layers__ssm_conv_s4d__glu_gated_bilinear__prompt'

def setup_inputs():

    _w = (lambda a: (lambda t: t.to(torch.bfloat16) if t.is_floating_point() else t)(torch.as_tensor(a)))
    def _A_setup():
        Bsz, L, D, N = 1, 2048, 512, 128
        return {
            "u": _w((lambda *s: torch.randn(*s, dtype=torch.bfloat16) * 0.05)(Bsz, L, D)),
            "log_A_real": _w((lambda *s: torch.randn(*s, dtype=torch.bfloat16) * 3.2)(D, N) * 0.5),
            "A_imag": _w((lambda *s: torch.randn(*s, dtype=torch.bfloat16) * 0.05)(D, N) * 3.14),
            "C_real": _w((lambda *s: torch.randn(*s, dtype=torch.bfloat16) * 0.05)(D, N) / N ** 0.5),
            "C_imag": _w((lambda *s: torch.randn(*s, dtype=torch.bfloat16) * 0.05)(D, N) / N ** 0.5),
            "log_dt": _w((lambda *s: torch.randn(*s, dtype=torch.bfloat16) * 0.05)(D) * 0.5 - 4.0),
            "D_skip": _w((lambda *s: torch.randn(*s, dtype=torch.bfloat16) * 0.05)(D)),
        }
    _A_in = _A_setup()

    def _B_setup():
        B, S, D, F = 1, 2048, 512, 1376
        return {
            "x": _w((lambda *s: torch.randn(*s, dtype=torch.bfloat16) * 0.05)(B, S, D)),
            "w_gate": _w((lambda *s: torch.randn(*s, dtype=torch.bfloat16) * 0.4)(D, F) * (D ** -0.5)),
            "w_up": _w((lambda *s: torch.randn(*s, dtype=torch.bfloat16) * 0.4)(D, F) * (D ** -0.5)),
            "w_down": _w((lambda *s: torch.randn(*s, dtype=torch.bfloat16) * 0.4)(F, D) * (F ** -0.5)),
        }
    _B_in = _B_setup()

    return {
        "A_u": _A_in["u"],
        "A_log_A_real": _A_in["log_A_real"],
        "A_A_imag": _A_in["A_imag"],
        "A_C_real": _A_in["C_real"],
        "A_C_imag": _A_in["C_imag"],
        "A_log_dt": _A_in["log_dt"],
        "A_D_skip": _A_in["D_skip"],
        "B_x": _B_in["x"],
        "B_w_gate": _B_in["w_gate"],
        "B_w_up": _B_in["w_up"],
        "B_w_down": _B_in["w_down"],
    }

def reference(A_u, A_log_A_real, A_A_imag, A_C_real, A_C_imag, A_log_dt, A_D_skip, B_x, B_w_gate, B_w_up, B_w_down):
    def _A_ref(u, log_A_real, A_imag, C_real, C_imag, log_dt, D_skip):
        L = u.shape[1]
        dt = torch.exp(log_dt)
        A = -torch.exp(log_A_real) + 1j * A_imag
        C = (C_real + 1j * C_imag) * dt[:, None]
        pos = (lambda x, dt: x.to(dt))(torch.arange(L), log_dt.dtype)
        P = torch.exp((A * dt[:, None])[:, :, None] * pos[None, None, :])
        K = 2.0 * torch.einsum("dn,dnl->dl", C, P).real
        L2 = 2 * L
        u_t = (lambda x, *d: x.permute(*d))(u, 0, 2, 1)
        Kf = (lambda x, *a, **k: torch.fft.rfft(x.float(), *a, **k))(K, L2)
        Uf = (lambda x, *a, **k: torch.fft.rfft(x.float(), *a, **k))(u_t, L2)
        y = (lambda x, *a, **k: torch.fft.irfft(x, *a, **k).to(torch.bfloat16))(Uf * Kf[None, :, :], L2)[:, :, :L]
        y = (lambda x, *d: x.permute(*d))(y, 0, 2, 1)
        return y + u * D_skip[None, None, :]

    def _B_ref(x, w_gate, w_up, w_down):
        g = torch.einsum("bsd,df->bsf", x, w_gate)
        u = torch.einsum("bsd,df->bsf", x, w_up)
        h = g * u
        return torch.einsum("bsf,fd->bsd", h, w_down)

    x = A_u
    x = x + _A_ref(_layernorm(x, axis=-1), A_log_A_real, A_A_imag, A_C_real, A_C_imag, A_log_dt, A_D_skip)
    x = x + _B_ref(_layernorm(x, axis=-1), B_w_gate, B_w_up, B_w_down)
    x = x + _A_ref(_layernorm(x, axis=-1), A_log_A_real, A_A_imag, A_C_real, A_C_imag, A_log_dt, A_D_skip)
    x = x + _B_ref(_layernorm(x, axis=-1), B_w_gate, B_w_up, B_w_down)
    return x
```

```python
import re
TRANS = ("v_exp_f32","v_log_f32","v_rcp_f32","v_rsq_f32","v_sqrt_f32","v_sin_f32","v_cos_f32","v_rcp_iflag_f32")
def regs(tok):
    tok = tok.strip().lstrip("-").strip("|")
    m = re.fullmatch(r"([vsa])(\d+)", tok)
    if m: return [(m.group(1), int(m.group(2)))]
    m = re.fullmatch(r"([vsa])\[(\d+):(\d+)\]", tok)
    if m: return [(m.group(1), i) for i in range(int(m.group(2)), int(m.group(3))+1)]
    if tok == "vcc": return [("s", "vcc")]
    if tok in ("vcc_lo", "vcc_hi"): return [("s", "vcc")]
    if tok == "exec": return [("s", "exec")]
    if tok == "m0": return [("s", "m0")]
    return []
class Ins:
    def __init__(self, line):
        self.line = line
        s = line.split(";")[0].strip()
        parts = s.split(None, 1)
        self.op = parts[0]
        rest = parts[1] if len(parts) > 1 else ""
        ops = [o.strip() for o in rest.split(",")] if rest else []
        mods = ""
        if ops:
            m = re.search(r"\s(op_sel|op_sel_hi|neg_lo|neg_hi|offen|offset|lds|sc0|sc1|nt|row_|quad_perm|bound_ctrl|bank_mask|clamp|mul:|div:|cbsz|dst_sel|src0_sel|off\b)", " " + rest)
            if m:
                cut = m.start()
                mods = (" " + rest)[cut:]
                rest = (" " + rest)[:cut]
                ops = [o.strip() for o in rest.split(",") if o.strip()]
        self.mods = mods
        op = self.op
        if op.endswith("_e32") or op.endswith("_e64"): op = op[:-4]
        if op.endswith("_dpp"): op = op[:-4]
        self.base = op
        self.kind = "other"; self.w = []; self.r = []; self.nop = 1
        R = [regs(o) for o in ops]
        flat = lambda l: [x for y in l for x in y]
        self.srcc = []; self.passes = 0; self.dpp = ("row_" in mods or "quad_perm" in mods)
        self.wide_store = []
        self.ldsdma = False
        if op == "s_nop":
            self.nop = int(ops[0], 0) + 1
        elif op.startswith("v_mfma"):
            self.kind = "mfma"; self.w = R[0]; self.r = flat(R[1:]); self.srcc = R[3]; self.ab = R[1] + R[2]
            self.passes = 8 if "32x32x16" in op else 4
        elif op.startswith("v_"):
            self.kind = "valu"
            if "permlane" in op and "swap" in op:
                self.w = R[0] + R[1]; self.r = R[0] + R[1]
            elif op in ("v_add_co_u32", "v_sub_co_u32", "v_addc_co_u32", "v_subb_co_u32"):
                self.w = R[0] + R[1]; self.r = flat(R[2:])
            else:
                self.w = R[0]; self.r = flat(R[1:])
                if op.startswith("v_dot2c") or op.startswith("v_fmac") or op.startswith("v_mac") or self.dpp or op.startswith("v_pk_fmac"): self.r = self.r + R[0]
                if op == "v_cndmask_b32" and len(ops) == 3: self.r = self.r + [("s", "vcc")]
        elif op.startswith("buffer_") or op.startswith("global_"):
            self.kind = "vmem"
            if " lds" in mods or "_lds_" in op:
                self.ldsdma = True; self.r = flat(R) + [("s", "m0")]
            elif "_load" in op:
                self.w = R[0]; self.r = flat(R[1:])
                if "d16" in op: self.r = self.r + R[0]
            else:
                self.r = flat(R)
                if op.endswith("x3") or op.endswith("x4"):
                    self.wide_store = R[0] if op.startswith("buffer_") else R[1]
                if "atomic" in op and "sc0" in mods: self.w = R[0]
        elif op.startswith("ds_"):
            self.kind = "ds"
            if "read" in op or "permute" in op or "swizzle" in op:
                self.w = R[0]; self.r = flat(R[1:])
                if "d16" in op: self.r = self.r + R[0]
            else: self.r = flat(R)
        elif op.startswith("s_"):
            self.kind = "salu"
            if op.startswith("s_cmp") or op.startswith("s_cbranch") or op in ("s_branch","s_waitcnt","s_barrier","s_endpgm","s_setprio","s_sleep"):
                self.r = flat(R)
            else:
                self.w = R[0] if R else []; self.r = flat(R[1:])
                if "saveexec" in op: self.w = self.w + [("s", "exec")]
        self.trans = op in TRANS
        self.dot = op.startswith("v_dot")
        self.ws = set(self.w); self.rs = set(self.r)
def need(p, c):
    n = 0
    vw = {x for x in p.ws if x[0] != "s"}; sw = {x for x in p.ws if x[0] == "s"}
    if p.wide_store:
        if set(p.wide_store) & c.ws: n = max(n, 2 if c.kind == "valu" else 1)
    if p.kind == "valu":
        if sw & c.rs:
            if c.kind == "vmem": n = max(n, 5)
            if c.kind == "valu": n = max(n, 4 if "lane" in c.base else 2)
        if vw & c.rs:
            if c.dpp: n = max(n, 2)
            if c.base in ("v_readfirstlane_b32", "v_readlane_b32"): n = max(n, 1)
            if "permlane" in c.base: n = max(n, 2)
            if c.kind == "mfma": n = max(n, 2)
            if p.trans and c.kind in ("valu",) and not c.trans: n = max(n, 1)
            if p.trans and c.kind in ("vmem", "ds"): n = max(n, 1)
        if p.dot and (vw & (c.rs | c.ws)):
            same_c = (c.base == p.base)
            if same_c:
                ab = set(c.r[:2]) if not c.base.startswith("v_dot2c") else set(c.r[:2])
                if vw & ab: n = max(n, 3)
            else: n = max(n, 3)
    if p.kind == "salu" and ("s", "m0") in p.ws and c.ldsdma: n = max(n, 1)
    if p.kind == "mfma":
        big = 12 if p.passes == 8 else 8
        if c.kind == "mfma":
            if vw & set(c.ab): n = max(n, big)
            if vw & set(c.srcc):
                if not (list(c.srcc) == list(p.w) and c.passes == p.passes): n = max(n, 10 if p.passes == 8 else 6)
            elif vw & c.ws: n = max(n, big)
        elif c.kind == "valu":
            if vw & (c.rs | c.ws): n = max(n, big)
            if set(p.srcc) & c.ws: n = max(n, 7 if p.passes == 8 else 3)
        elif c.kind in ("vmem", "ds"):
            if vw & (c.rs | c.ws): n = max(n, big)
    return n
class Asm:
    def __init__(self):
        self.launches = []; self.text = []; self.descs = []; self.uid = 0
    def launch(self, label, grid, block, lds):
        self.launches.append("; @launch kernel=%s grid=(%d,1,1) block=(%d,1,1) lds=%d" % (label, grid, block, lds))
    def e(self, s):
        for line in s.split("\n"):
            line = line.strip()
            if not line or line.startswith(";"): continue
            self.text.append(line)
    def label(self, name): self.text.append(name + ":")
    def newlabel(self, base="L"):
        self.uid += 1
        return "%s_%d" % (base, self.uid)
    def begin(self, label):
        self.text += [".globl %s" % label, ".p2align 8", ".type %s,@function" % label, label + ":"]
    def desc(self, label, vgpr, accum=None, sgpr=96):
        if accum is None: accum = min(256, (vgpr + 3) // 4 * 4)
        self.descs.append(""".p2align 6
.amdhsa_kernel %s
  .amdhsa_next_free_vgpr %d
  .amdhsa_next_free_sgpr %d
  .amdhsa_accum_offset %d
  .amdhsa_group_segment_fixed_size 0
  .amdhsa_kernarg_size 112
  .amdhsa_user_sgpr_count 2
  .amdhsa_user_sgpr_kernarg_segment_ptr 1
  .amdhsa_system_sgpr_workgroup_id_x 1
.end_amdhsa_kernel""" % (label, vgpr, sgpr, accum))
    def pad(self):
        out = []; hist = []
        self.npad = 0
        for line in self.text:
            if line.endswith(":") or line.startswith("."):
                out.append(line); continue
            c = Ins(line)
            req = 0; d = 0
            for p in reversed(hist[-16:]):
                req = max(req, need(p, c) - d)
                d += p.nop
                if d >= 12: break
            if req > 0:
                nop = Ins("s_nop %d" % (req-1)); out.append(nop.line + " ; pad"); hist.append(nop); self.npad += 1
            out.append(line); hist.append(c)
            if c.base in ("s_branch", "s_endpgm"): hist = []
        labels = {l[:-1]: i for i, l in enumerate(out) if l.endswith(":")}
        for i, l in enumerate(out):
            m = re.match(r"s_c?branch\w*\s+(\w+)", l)
            if not m or m.group(1) not in labels: continue
            pre = [Ins(x) for x in out[max(0, i-16):i+1] if not (x.endswith(":") or x.startswith("."))]
            post = [Ins(x) for x in out[labels[m.group(1)]:labels[m.group(1)]+20] if not (x.endswith(":") or x.startswith("."))]
            dpost = 0
            for c in post:
                d = dpost
                for p in reversed(pre):
                    if need(p, c) > d: raise Exception("edge hazard at branch %s: %s -> %s" % (l, p.line, c.line))
                    d += p.nop
                dpost += c.nop
                if c.base in ("s_branch", "s_endpgm"): break
        return out
    def out(self):
        body = []
        for l in self.pad():
            body.append(l if (l.endswith(":") or l.startswith(".")) else "  " + l)
        return "\n".join(self.launches) + "\n" + '.amdgcn_target "amdgcn-amd-amdhsa--gfx950"\n.text\n' + "\n".join(body) + '\n.section .rodata,"a"\n' + "\n".join(self.descs) + "\n"
```

```python
import struct, math
XA=0x000000; XB=0x200000; HP=0x800000; KR=0xE00000; W1P=0x1200000
ST=0x1500000; RS2=0x1508000; WS_USED=0x1600000
WBYTES=1409024
LOG2E=1.4426950408889634; INV2PI=0.15915494309189535
def fl(x): return "0x%08x" % struct.unpack("<I", struct.pack("<f", x))[0]
```

```python
from consts import *
KSTR, CSTR = 8320, 4160
UOFF, USTR = 16640, 4608
POFF = UOFF + 2*USTR
CONV_LDS = POFF + 32768
def gen_conv(a):
    a.begin("conv_kernel")
    a.e("""
    s_load_dwordx2 s[4:5], s[0:1], 104
    s_load_dwordx2 s[8:9], s[0:1], 48
    s_cmp_ge_u32 s2, 256
    s_cbranch_scc1 conv_end
    v_lshrrev_b32 v1, 6, v0
    v_and_b32 v2, 63, v0
    s_mov_b32 s6, %d
    s_mov_b32 s7, 0x20000
    v_readfirstlane_b32 s3, v1
    s_cmp_ge_u32 s3, 4
    s_cbranch_scc1 conv_help
    """ % WS_USED)
    A0, B0, ACC = 80, 16, 208
    a.e("""
    s_setprio 2
    s_lshr_b32 s10, s3, 1            ; c
    s_and_b32 s11, s3, 1             ; h
    s_lshl_b32 s12, s2, 14
    s_lshl_b32 s13, s3, 12
    s_add_u32 s12, s12, s13
    s_add_u32 s12, s12, %d           ; global src of my K copy
    s_mul_i32 s13, s3, %d            ; lds dst
    s_mov_b32 m0, s13
    v_lshlrev_b32 v3, 4, v2
    v_mov_b32 v4, 0
    v_lshl_add_u32 v5, v2, 2, s13
    s_waitcnt lgkmcnt(0)
    buffer_load_dwordx4 v3, s[4:7], s12 offen lds
    buffer_load_dwordx4 v3, s[4:7], s12 offen offset:1024 lds
    buffer_load_dwordx4 v3, s[4:7], s12 offen offset:2048 lds
    buffer_load_dwordx4 v3, s[4:7], s12 offen offset:3072 lds
    s_mov_b64 exec, 0xffff
    ds_write_b32 v5, v4 offset:4096
    s_mov_b64 exec, -1
    v_and_b32 v6, 15, v2             ; m / n
    v_lshrrev_b32 v7, 4, v2          ; kq / q
    ; A base: c*KSTR + (m even ? CSTR : 0) + 2*(2031-(m|1)+8kq) - 64*(4h+3) - 3584
    v_or_b32 v8, 1, v6
    v_lshlrev_b32 v8, 1, v8
    v_lshlrev_b32 v9, 4, v7
    v_sub_u32 v8, v9, v8
    v_and_b32 v9, 1, v6
    v_mul_u32_u24 v9, %d, v9
    v_sub_u32 v8, v8, v9
    s_mul_i32 s14, s10, %d
    s_lshl_b32 s15, s11, 8
    s_sub_u32 s14, s14, s15
    s_add_u32 s14, s14, %d
    v_add_u32 v8, s14, v8
    v_add_u32 v9, 1024, v8
    v_add_u32 v10, 2048, v8
    v_add_u32 v11, 3072, v8
    ; B base: UOFF + c*USTR + 2*(240+16n+8kq) - 64*(4h+3)
    v_lshlrev_b32 v12, 5, v6
    v_lshl_add_u32 v12, v7, 4, v12
    s_mul_i32 s14, s10, %d
    s_sub_u32 s14, s14, s15
    s_add_u32 s14, s14, %d
    v_add_u32 v12, s14, v12
    ; partial write addr: POFF + wave*8192 + 64n + 16*(q ^ ((n>>1)&3))
    v_bfe_u32 v13, v6, 1, 2
    v_xor_b32 v13, v13, v7
    v_lshlrev_b32 v13, 4, v13
    v_lshl_add_u32 v13, v6, 6, v13
    s_lshl_b32 s14, s3, 13
    s_add_u32 s14, s14, %d
    v_add_u32 v13, s14, v13
    s_waitcnt vmcnt(0) lgkmcnt(0)
    s_barrier
    """ % (KR, CSTR, CSTR, KSTR, CSTR + 2*2031 - 192 - 3584, USTR, UOFF + 480 - 192, POFF))
    def areg(r, aa): return A0 + 32*r + 4*aa
    def breg(buf, r, bb): return B0 + 32*buf + 8*r + 4*bb
    def read_a(r, aa):
        off = 64*(3-r) + 512*(7-aa)
        base, o = 8 + off // 1024, (off % 1024) // 4
        a.e("ds_read2_b32 v[%d:%d], v%d offset0:%d offset1:%d" % (areg(r,aa), areg(r,aa)+1, base, o, o+1))
        a.e("ds_read2_b32 v[%d:%d], v%d offset0:%d offset1:%d" % (areg(r,aa)+2, areg(r,aa)+3, base, o+2, o+3))
    def read_b(p):
        for r in range(4):
            for bb in range(2):
                a.e("ds_read_b128 v[%d:%d], v12 offset:%d" % (breg(p&1,r,bb), breg(p&1,r,bb)+3, 512*(2*p+bb) + 64*(3-r)))
    NPRE = 2
    for r in range(NPRE):
        for aa in range(8): read_a(r, aa)
    a.e("s_barrier")
    read_b(0)
    first = [True]*8
    def mm(r, aa, p, bb):
        i = aa + 2*p + bb
        c = "0" if first[i] else "v[%d:%d]" % (ACC+4*i, ACC+4*i+3)
        first[i] = False
        a.e("v_mfma_f32_16x16x32_bf16 v[%d:%d], v[%d:%d], v[%d:%d], %s" % (ACC+4*i, ACC+4*i+3, areg(r,aa), areg(r,aa)+3, breg(p&1,r,bb), breg(p&1,r,bb)+3, c))
    for p in range(4):
        for r in range(4):
            seq = []
            for aa in range(8-2*p):
                seq.append((aa, 0))
                if aa < 7-2*p: seq.append((aa, 1))
            if p == 0:
                if r == 0: a.e("s_waitcnt lgkmcnt(6)")
                elif r == 1: a.e("s_waitcnt lgkmcnt(15)")
                else: a.e("s_waitcnt lgkmcnt(%d)" % (15 if r == 2 else 0))
            elif r == 0 and p == 1: a.e("s_waitcnt lgkmcnt(0)")
            for k, (aa, bb) in enumerate(seq):
                mm(r, aa, p, bb)
                if p in (1, 2) and r == 0 and k == 0: read_b(p+1)
                if p == 0 and r < 4-NPRE and k % 2 == 0: read_a(r+NPRE, k//2)
                if r == 3 and k == min(6, len(seq)-1):
                    for bb2 in range(2):
                        i = 2*p+bb2
                        a.e("ds_write_b128 v13, v[%d:%d] offset:%d" % (ACC+4*i, ACC+4*i+3, 1024*i))
                    a.e("s_waitcnt lgkmcnt(0)\ns_barrier")
                    if p == 0: read_b(1)
    a.e("conv_end:\ns_endpgm")
    a.label("conv_help")
    XR, SR = 8, 16
    XF, TF, UB = 32, 48, 64
    a.e("""
    v_and_b32 v3, 255, v0
    v_lshlrev_b32 v4, 2, v3
    v_lshlrev_b32 v5, 4, v3
    s_lshl_b32 s12, s2, 13
    s_add_u32 s13, s12, %d
    s_add_u32 s12, s12, %d
    s_mov_b32 s14, %d
    s_mov_b32 s15, %d
    s_mov_b32 s16, %d
    s_mov_b32 s17, %d
    s_lshl_b32 s18, s2, 2
    v_mov_b32 v6, 0
    s_waitcnt lgkmcnt(0)
    s_load_dword s19, s[8:9], s18
    """ % (XA + 4096, XA, ST, ST+4096, ST+8192, ST+12288))
    for c in range(4):
        a.e("buffer_load_dwordx4 v[%d:%d], v5, s[4:7], s%d offen" % (SR+4*c, SR+4*c+3, 14+c))
        a.e("buffer_load_dword v%d, v4, s[4:7], s12 offen offset:%d" % (XR+2*c, 1024*c))
        a.e("buffer_load_dword v%d, v4, s[4:7], s13 offen offset:%d" % (XR+2*c+1, 1024*c))
    a.e("""
    ; zero pad of u: 2 x 512 B
    v_and_b32 v7, 127, v3
    v_lshrrev_b32 v72, 7, v3
    v_mul_u32_u24 v72, %d, v72
    v_lshl_add_u32 v7, v7, 2, v72
    ds_write_b32 v7, v6 offset:%d
    ; partial read addr
    v_lshrrev_b32 v72, 3, v3         ; i_lo*16+n
    v_bfe_u32 v73, v3, 4, 2          ; (n>>1)&3
    v_bfe_u32 v74, v3, 1, 2          ; q
    v_xor_b32 v73, v73, v74
    v_lshlrev_b32 v73, 4, v73
    v_lshl_add_u32 v73, v72, 6, v73
    v_and_b32 v74, 1, v3
    v_lshl_add_u32 v7, v74, 3, v73
    s_add_u32 s20, s12, %d
    s_add_u32 s21, s13, %d
    s_mov_b32 s22, %s
    s_mov_b32 s23, %s
    s_mov_b32 s24, %s
    s_mov_b32 s25, %s
    s_barrier
    """ % (USTR, UOFF, XB-XA, XB-XA, fl(1/512), fl(1/512), fl(1e-5), fl(1e-5)))
    def unpack(d, s):
        return ["v_lshlrev_b32 v%d, 16, v%d" % (d, s), "v_and_b32 v%d, 0xffff0000, v%d" % (d+1, s)]
    def N(c, t):
        s = SR + 4*c
        m, v = t, t+2
        L = []
        L.append("v_pk_mul_f32 v[%d:%d], v[%d:%d], s[22:23]" % (s, s+1, s, s+1))
        L.append("v_pk_mul_f32 v[%d:%d], v[%d:%d], s[22:23]" % (s+2, s+3, s+2, s+3))
        L.append("v_fma_f32 v%d, -v%d, v%d, v%d" % (s+1, s, s, s+1))
        L.append("v_fma_f32 v%d, -v%d, v%d, v%d" % (s+3, s+2, s+2, s+3))
        L.append("v_cvt_pk_bf16_f32 v%d, v%d, v%d" % (s+1, s+1, s+3))
        L.append("v_cvt_pk_bf16_f32 v%d, v%d, v%d" % (s, s, s+2))
        L.append("v_pk_max_i16 v%d, v%d, 0" % (s+1, s+1))
        L += unpack(m, s)
        L += unpack(v, s+1)
        L += unpack(XF+4*c, XR+2*c)
        L.append("v_pk_add_f32 v[%d:%d], v[%d:%d], s[24:25]" % (v, v+1, v, v+1))
        L += unpack(XF+4*c+2, XR+2*c+1)
        L.append("v_cvt_pk_bf16_f32 v%d, v%d, v%d" % (s+1, v, v+1))
        L.append("v_pk_add_f32 v[%d:%d], v[%d:%d], v[%d:%d] neg_lo:[0,1] neg_hi:[0,1]" % (s+2, s+3, XF+4*c, XF+4*c+1, m, m+1))
        L += unpack(v, s+1)
        L.append("v_pk_add_f32 v[%d:%d], v[%d:%d], v[%d:%d] neg_lo:[0,1] neg_hi:[0,1]" % (m, m+1, XF+4*c+2, XF+4*c+3, m, m+1))
        L.append("v_sqrt_f32 v%d, v%d" % (v, v)); L.append("v_sqrt_f32 v%d, v%d" % (v+1, v+1))
        L.append("v_cvt_pk_bf16_f32 v%d, v%d, v%d" % (s, s+2, s+3))
        L.append("v_cvt_pk_bf16_f32 v%d, v%d, v%d" % (s+1, v, v+1))
        L.append("v_cvt_pk_bf16_f32 v%d, v%d, v%d" % (t+4, m, m+1))
        L += unpack(v, s+1)
        L += unpack(s+2, s)
        L.append("v_rcp_f32 v%d, v%d" % (v, v)); L.append("v_rcp_f32 v%d, v%d" % (v+1, v+1))
        L += unpack(m, t+4)
        L.append("v_pk_mul_f32 v[%d:%d], v[%d:%d], v[%d:%d]" % (s+2, s+3, s+2, s+3, v, v+1))
        L.append("v_pk_mul_f32 v[%d:%d], v[%d:%d], v[%d:%d]" % (m, m+1, m, m+1, v, v+1))
        L.append("v_cvt_pk_bf16_f32 v%d, v%d, v%d" % (UB+2*c, s+2, s+3))
        L.append("v_cvt_pk_bf16_f32 v%d, v%d, v%d" % (UB+2*c+1, m, m+1))
        L.append("ds_write_b32 v4, v%d offset:%d" % (UB+2*c, UOFF + 512 + 1024*c))
        L.append("ds_write_b32 v4, v%d offset:%d" % (UB+2*c+1, UOFF + USTR + 512 + 1024*c))
        return L
    def T(c):
        L = []
        for ch in range(2): L += unpack(TF+4*c+2*ch, UB+2*c+ch)
        for ch in range(2): L.append("v_pk_mul_f32 v[%d:%d], v[%d:%d], s[%d:%d]" % (TF+4*c+2*ch, TF+4*c+2*ch+1, TF+4*c+2*ch, TF+4*c+2*ch+1, 26+2*ch, 27+2*ch))
        for ch in range(2): L.append("v_cvt_pk_bf16_f32 v%d, v%d, v%d" % (UB+2*c+ch, TF+4*c+2*ch, TF+4*c+2*ch+1))
        for ch in range(2): L += unpack(TF+4*c+2*ch, UB+2*c+ch)
        return L
    def Eread(c):
        return ["ds_read_b64 v[%d:%d], v7 offset:%d" % (80+2*w, 81+2*w, POFF + 8192*w + 2048*c) for w in range(4)]
    def E(c):
        L = ["s_waitcnt lgkmcnt(0)"]
        for ch in range(2): L.append("v_pk_add_f32 v[%d:%d], v[%d:%d], v[%d:%d]" % (80+4*ch, 81+4*ch, 80+4*ch, 81+4*ch, 82+4*ch, 83+4*ch))
        for src in (TF, XF):
            for ch in range(2): L.append("v_cvt_pk_bf16_f32 v%d, v%d, v%d" % (82+4*ch, 80+4*ch, 81+4*ch))
            for ch in range(2): L += unpack(80+4*ch, 82+4*ch)
            for ch in range(2): L.append("v_pk_add_f32 v[%d:%d], v[%d:%d], v[%d:%d]" % (80+4*ch, 81+4*ch, 80+4*ch, 81+4*ch, src+4*c+2*ch, src+4*c+2*ch+1))
        for ch in range(2): L.append("v_cvt_pk_bf16_f32 v%d, v%d, v%d" % (88+2*c+ch, 80+4*ch, 81+4*ch))
        for ch in range(2): L.append("buffer_store_dword v%d, v4, s[4:7], s%d offen offset:%d" % (88+2*c+ch, 20+ch, 1024*c))
        return L
    def emit(*Ls):
        n = max(len(L) for L in Ls)
        for i in range(n):
            for L in Ls:
                if i < len(L): a.e(L[i])
    a.e("s_waitcnt vmcnt(9)")
    emit(N(0, 72))
    a.e("s_waitcnt lgkmcnt(0)\ns_barrier")
    a.e("s_lshl_b32 s26, s19, 16\ns_and_b32 s28, s19, 0xffff0000\ns_mov_b32 s27, s26\ns_mov_b32 s29, s28")
    a.e("s_waitcnt vmcnt(3)")
    emit(N(1, 72), N(2, 100))
    a.e("s_waitcnt lgkmcnt(0)\ns_barrier")
    emit(Eread(0))
    a.e("s_waitcnt vmcnt(0)")
    emit(N(3, 72)[:-2], T(0))
    emit(E(0)); emit(N(3, 72)[-2:])
    a.e("s_waitcnt lgkmcnt(0)\ns_barrier")
    emit(Eread(1)); emit(T(1)); emit(E(1)); emit(T(2), T(3))
    a.e("s_barrier")
    emit(Eread(2)); emit(E(2))
    a.e("s_barrier")
    emit(Eread(3)); emit(E(3))
    a.e("s_endpgm")
    a.desc("conv_kernel", 240)
```

```python
from consts import *
from prep import reduce16
SLOT, XOFF = 40960, 24576
G1_LDS = 4*SLOT
assert [(f*171) >> 5 for f in range(16)] == [(f*16)//3 for f in range(16)]
def gen_gemm1(a, MAP="Q"):
    a.begin("gemm1_kernel")
    a.e("""
    s_load_dwordx2 s[4:5], s[0:1], 104
    s_cmp_ge_u32 s2, 256
    s_cbranch_scc1 g1_end
    v_lshrrev_b32 v1, 6, v0
    v_and_b32 v2, 63, v0
    s_mov_b32 s6, %d
    s_mov_b32 s7, 0x20000
    v_readfirstlane_b32 s3, v1
    s_and_b32 s10, s2, 7
    s_lshr_b32 s11, s2, 3
    """ % WS_USED)
    if MAP == "Q":
        a.e("""
        s_and_b32 s12, s10, 1
        s_lshl_b32 s12, s12, 3
        s_and_b32 s13, s11, 7
        s_add_u32 s12, s12, s13          ; tg
        s_lshr_b32 s13, s10, 1
        s_lshl_b32 s13, s13, 2
        s_lshr_b32 s14, s11, 3
        s_add_u32 s13, s13, s14          ; fg
        """)
    else:
        a.e("""
        s_lshl_b32 s12, s10, 1
        s_and_b32 s13, s11, 1
        s_add_u32 s12, s12, s13          ; tg
        s_lshr_b32 s13, s11, 1           ; fg
        """)
    a.e("""
    s_mul_i32 s14, s13, 171
    s_lshr_b32 s14, s14, 5           ; b0
    s_cmp_ge_u32 s3, 4
    s_cbranch_scc1 g1_load
    """)
    ACC, FR = 32, 128
    a.e("""
    s_setprio 2
    s_and_b32 s15, s3, 1             ; mh
    s_lshr_b32 s16, s3, 1            ; nh
    s_mul_i32 s17, s15, 12288
    v_lshl_add_u32 v3, v2, 4, s17    ; A base
    v_bfe_u32 v9, v2, 2, 2           ; r
    v_lshrrev_b32 v10, 5, v2         ; hh
    v_lshl_add_u32 v10, v10, 3, v9
    v_lshlrev_b32 v10, 8, v10
    v_bfe_u32 v11, v2, 4, 1
    v_lshl_add_u32 v10, v11, 5, v10
    v_and_b32 v11, 3, v2
    v_lshl_add_u32 v10, v11, 3, v10
    v_add_u32 v10, %d, v10
    s_lshl_b32 s17, s16, 1
    v_xor_b32 v9, s17, v9
    v_lshl_add_u32 v4, v9, 6, v10
    v_xor_b32 v9, 1, v9
    v_lshl_add_u32 v5, v9, 6, v10
    v_mov_b32 v6, v3
    v_mov_b32 v7, v4
    v_mov_b32 v8, v5
    ; h store base: HP + ((4tg+2nh)*86 + b0 + 3mh)*1024
    s_lshl_b32 s18, s12, 2
    s_add_u32 s18, s18, s17
    s_mul_i32 s18, s18, 86
    s_add_u32 s18, s18, s14
    s_mul_i32 s19, s15, 3
    s_add_u32 s18, s18, s19
    s_lshl_b32 s18, s18, 10
    s_add_u32 s18, s18, %d
    s_add_u32 s19, s18, %d
    v_lshlrev_b32 v9, 4, v2
    s_mov_b32 s20, 0                 ; slot offset
    s_mov_b32 s21, 0                 ; stage
    """ % (XOFF, HP, 86*1024))
    for i in range(96): a.e("v_mov_b32 v%d, 0" % (ACC+i))
    def fa(buf, mt): return FR + 20*buf + 4*mt
    def fb(buf, nt): return FR + 20*buf + 12 + 4*nt
    def rdA(buf, mt, ks): return "ds_read_b128 v[%d:%d], v6 offset:%d" % (fa(buf,mt), fa(buf,mt)+3, mt*4096 + ks*1024)
    def rdB(buf, nt, ks, j): return "ds_read_b64_tr_b16 v[%d:%d], v%d offset:%d" % (fb(buf,nt)+2*j, fb(buf,nt)+2*j+1, 7+nt, ks*4096 + j*1024)
    def groups(buf, ks): return [[rdB(buf,0,ks,0), rdB(buf,0,ks,1), rdA(buf,0,ks)], [rdB(buf,1,ks,0), rdB(buf,1,ks,1), rdA(buf,1,ks)], [rdA(buf,2,ks)]]
    a.e("s_barrier")
    for g in groups(0, 0):
        for r in g: a.e(r)
    a.label("g1_loop")
    for ks in range(4):
        buf = ks & 1
        if ks == 3:
            a.e("""
            s_add_u32 s20, s20, %d
            s_cmp_eq_u32 s20, %d
            s_cselect_b32 s20, 0, s20
            s_add_u32 s21, s21, 1
            v_add_u32 v6, s20, v3
            v_add_u32 v7, s20, v4
            v_add_u32 v8, s20, v5
            s_cmp_eq_u32 s21, 8
            s_waitcnt lgkmcnt(0)
            s_cbranch_scc1 g1_nobar
            s_barrier
            g1_nobar:
            """ % (SLOT, 4*SLOT))
        else:
            a.e("s_waitcnt lgkmcnt(0)")
        gs = groups(buf ^ 1, (ks+1) & 3)
        k = 0
        for mt in range(3):
            for nt in range(2):
                ac = ACC + 16*(2*mt+nt)
                a.e("v_mfma_f32_32x32x16_bf16 v[%d:%d], v[%d:%d], v[%d:%d], v[%d:%d]" % (ac, ac+15, fa(buf,mt), fa(buf,mt)+3, fb(buf,nt), fb(buf,nt)+3, ac, ac+15))
                if k < 3:
                    for r in gs[k]: a.e(r)
                k += 1
    a.e("s_cbranch_scc0 g1_loop")
    a.e("s_waitcnt lgkmcnt(0)")
    for mt in range(3):
        for nt in range(2):
            ac = ACC + 16*(2*mt+nt)
            for i in range(4): a.e("v_pk_mul_f32 v[%d:%d], v[%d:%d], v[%d:%d]" % (ac+2*i, ac+2*i+1, ac+2*i, ac+2*i+1, ac+8+2*i, ac+9+2*i))
            for i in range(4): a.e("v_cvt_pk_bf16_f32 v%d, v%d, v%d" % (ac+8+i, ac+2*i, ac+2*i+1))
            a.e("buffer_store_dwordx4 v[%d:%d], v9, s[4:7], s%d offen offset:%d" % (ac+8, ac+11, 18+nt, mt*1024))
    a.e("g1_end:\ns_endpgm")
    a.label("g1_load")
    a.e("""
    s_sub_u32 s15, s3, 4             ; lw
    v_lshlrev_b32 v3, 4, v2          ; W voffset
    v_lshrrev_b32 v5, 4, v2          ; r
    v_bfe_u32 v6, v2, 2, 2           ; cp
    v_xor_b32 v6, v6, v5
    v_lshlrev_b32 v4, 12, v5
    v_lshl_add_u32 v4, v6, 6, v4
    v_and_b32 v6, 3, v2
    v_lshl_add_u32 v4, v6, 4, v4     ; x voffset
    s_lshl_b32 s16, s14, 15
    s_lshl_b32 s17, s15, 10
    s_add_u32 s16, s16, s17
    s_add_u32 s16, s16, %d           ; W soffset (stage 0, mt 0)
    s_lshl_b32 s18, s15, 16
    s_lshl_b32 s19, s12, 8
    s_add_u32 s18, s18, s19
    s_add_u32 s18, s18, %d           ; x soffset (stage 0, i 0)
    s_lshl_b32 s19, s15, 12
    s_add_u32 s19, s19, %d           ; x lds base
    s_mov_b32 s20, 0                 ; slot offset for issue
    ; stats read addr: XOFF + row*256 + ((chunk ^ (row&3))*64) + sub*16 ; chunk = fg>>2, sub = fg&3
    v_and_b32 v6, 3, v2
    s_lshr_b32 s22, s13, 2
    v_xor_b32 v6, s22, v6
    v_lshlrev_b32 v6, 6, v6
    v_lshl_add_u32 v6, v2, 8, v6
    s_and_b32 s22, s13, 3
    s_lshl_b32 s22, s22, 4
    s_add_u32 s22, s22, %d
    v_add_u32 v6, s22, v6
    s_mov_b32 s23, 0                 ; slot offset for stats
    s_mov_b32 s21, 0                 ; barrier index
    v_mov_b32 v8, 0
    s_lshl_b32 s24, s2, 6
    s_add_u32 s24, s24, %d
    v_lshlrev_b32 v7, 2, v2
    s_waitcnt lgkmcnt(0)
    s_cmp_lg_u32 s15, 1
    s_cbranch_scc1 g1_nz
    s_mov_b64 exec, 0xffff
    buffer_store_dword v8, v7, s[4:7], s24 offen
    s_mov_b64 exec, -1
    g1_nz:
    s_mov_b32 s25, 4
    """ % (W1P, XB, XOFF, XOFF, ST))
    def issue():
        for i in range(4):
            if i == 0: a.e("s_add_u32 m0, s20, s19\ns_mov_b32 s26, s18")
            else: a.e("s_add_u32 m0, m0, 1024\ns_add_u32 s26, s26, 16384")
            a.e("buffer_load_dwordx4 v4, s[4:7], s26 offen lds")
        for mt in range(6):
            if mt == 0: a.e("s_add_u32 m0, s20, s17\ns_mov_b32 s26, s16")
            else: a.e("s_add_u32 m0, m0, 4096\ns_add_u32 s26, s26, 32768")
            a.e("buffer_load_dwordx4 v3, s[4:7], s26 offen lds")
        a.e("""
        s_add_u32 s16, s16, 4096
        s_add_u32 s18, s18, %d
        s_add_u32 s20, s20, %d
        s_cmp_eq_u32 s20, %d
        s_cselect_b32 s20, 0, s20
        """ % (64*4096, SLOT, 4*SLOT))
    S = [16, 18, 20, 22]; Q = [24, 26, 28, 30]
    for i in range(16, 32): a.e("v_mov_b32 v%d, 0" % i)
    a.label("g1_issue")
    issue()
    a.e("""
    s_sub_u32 s25, s25, 1
    s_cmp_lg_u32 s25, 0
    s_cbranch_scc1 g1_issue
    g1_lloop:
    s_cmp_eq_u32 s21, 0
    s_cbranch_scc1 g1_w30
    s_cmp_lg_u32 s15, 0
    s_cbranch_scc1 g1_nostat
    s_waitcnt lgkmcnt(0)
    """)
    def accum():
        for d in range(4):
            a.e("v_lshlrev_b32 v%d, 16, v%d\nv_and_b32 v%d, 0xffff0000, v%d" % (32+2*d, 12+d, 33+2*d, 12+d))
        for d in range(4):
            a.e("v_pk_add_f32 v[%d:%d], v[%d:%d], v[%d:%d]" % (S[d], S[d]+1, S[d], S[d]+1, 32+2*d, 33+2*d))
            a.e("v_pk_fma_f32 v[%d:%d], v[%d:%d], v[%d:%d], v[%d:%d]" % (Q[d], Q[d]+1, 32+2*d, 33+2*d, 32+2*d, 33+2*d, Q[d], Q[d]+1))
    accum()
    a.e("""
    g1_nostat:
    s_cmp_eq_u32 s21, 8
    s_cbranch_scc1 g1_lfin
    s_cmp_eq_u32 s21, 6
    s_cbranch_scc1 g1_w10
    s_cmp_eq_u32 s21, 7
    s_cbranch_scc1 g1_w0
    s_waitcnt vmcnt(20)
    g1_w30:
    s_waitcnt vmcnt(30)
    s_branch g1_bar
    g1_w0:
    s_waitcnt vmcnt(0)
    g1_w10:
    s_waitcnt vmcnt(10)
    g1_bar:
    s_barrier
    s_cmp_lg_u32 s15, 0
    s_cbranch_scc1 g1_nord
    v_add_u32 v9, s23, v6
    s_add_u32 s23, s23, %d
    s_cmp_eq_u32 s23, %d
    s_cselect_b32 s23, 0, s23
    ds_read_b128 v[12:15], v9
    g1_nord:
    s_add_u32 s21, s21, 1
    s_sub_u32 s27, s21, 2
    s_mov_b32 s25, 1
    s_cmp_lt_u32 s27, 4
    s_cbranch_scc1 g1_issue
    s_branch g1_lloop
    g1_lfin:
    s_cmp_lg_u32 s15, 0
    s_cbranch_scc1 g1_end
    """ % (SLOT, 4*SLOT))
    V = [[S[d] for d in range(4)], [Q[d] for d in range(4)], [S[d]+1 for d in range(4)], [Q[d]+1 for d in range(4)]]
    reduce16(a, V)
    a.e("""
    s_mov_b32 s28, %s
    s_mov_b32 s29, %s
    v_mul_f32 v16, s28, v16
    v_mul_f32 v17, s28, v17
    v_mul_f32 v24, s28, v24
    v_mul_f32 v25, s28, v25
    v_fma_f32 v24, -v16, v16, v24
    v_fma_f32 v25, -v17, v17, v25
    v_cvt_pk_bf16_f32 v24, v24, v25
    v_pk_max_i16 v24, v24, 0
    v_and_b32 v25, 0xffff0000, v24
    v_lshlrev_b32 v24, 16, v24
    v_add_f32 v24, s29, v24
    v_add_f32 v25, s29, v25
    v_cvt_pk_bf16_f32 v24, v24, v25
    v_and_b32 v25, 0xffff0000, v24
    v_lshlrev_b32 v24, 16, v24
    v_sqrt_f32 v24, v24
    v_sqrt_f32 v25, v25
    v_cvt_pk_bf16_f32 v24, v24, v25
    v_and_b32 v25, 0xffff0000, v24
    v_lshlrev_b32 v24, 16, v24
    v_mul_f32 v24, v24, v24
    v_mul_f32 v25, v25, v25
    v_rcp_f32 v24, v24
    v_rcp_f32 v25, v25
    v_lshrrev_b32 v7, 1, v2
    s_lshl_b32 s24, s12, 9
    s_lshl_b32 s26, s13, 5
    s_add_u32 s24, s24, s26
    s_add_u32 s24, s24, %d
    s_mov_b32 exec_lo, 0x10001
    s_mov_b32 exec_hi, 0x10001
    buffer_store_dwordx2 v[24:25], v7, s[4:7], s24 offen
    s_endpgm
    """ % (fl(1/512), fl(1e-5), RS2))
    a.desc("gemm1_kernel", 168)
```

```python
from consts import *
SLOT2 = 32768
G2_LDS = 5*SLOT2
def gen_gemm2(a):
    a.begin("gemm2b_kernel")
    a.e("""
    s_load_dwordx2 s[4:5], s[0:1], 104
    s_load_dwordx4 s[8:11], s[0:1], 80
    s_mov_b32 s40, 1
    s_branch g2_body
    """)
    a.begin("gemm2a_kernel")
    ACC, FR = 32, 48
    a.e("""
    s_load_dwordx2 s[4:5], s[0:1], 104
    s_load_dwordx4 s[8:11], s[0:1], 80
    s_mov_b32 s40, 0
    g2_body:
    s_cmp_ge_u32 s2, 256
    s_cbranch_scc1 g2_end
    v_lshrrev_b32 v1, 6, v0
    v_and_b32 v2, 63, v0
    s_mov_b32 s6, %d
    s_mov_b32 s7, 0x20000
    v_readfirstlane_b32 s3, v1
    s_and_b32 s16, s2, 7
    s_lshr_b32 s17, s2, 3
    s_lshl_b32 s16, s16, 2
    s_and_b32 s18, s17, 3
    s_add_u32 s16, s16, s18          ; tg2
    s_lshr_b32 s17, s17, 2           ; cg
    s_and_b32 s18, s3, 1             ; th
    s_lshr_b32 s19, s3, 1            ; chh
    ; H dma: soffset = HP + ((2tg2 + (w>>1))*86 + 4(w&1))*1024
    s_lshl_b32 s20, s16, 1
    s_add_u32 s20, s20, s19
    s_mul_i32 s20, s20, 86
    s_lshl_b32 s21, s18, 2
    s_add_u32 s20, s20, s21
    s_lshl_b32 s20, s20, 10
    s_add_u32 s20, s20, %d
    v_lshlrev_b32 v3, 4, v2
    ; Wd dma: voffset_i = (row + 8i)*1024 - 1024 i + ((cp ^ ((row>>1)&1))*64) + (l&3)*16 ; soffset = 32w*1024 + cg*128
    v_lshrrev_b32 v10, 3, v2
    v_bfe_u32 v11, v2, 2, 1
    v_bfe_u32 v12, v2, 4, 1
    v_xor_b32 v11, v11, v12
    v_lshlrev_b32 v4, 10, v10
    v_lshl_add_u32 v4, v11, 6, v4
    v_and_b32 v11, 3, v2
    v_lshl_add_u32 v4, v11, 4, v4
    v_add_u32 v5, 7168, v4
    v_add_u32 v6, 14336, v4
    v_add_u32 v7, 21504, v4
    s_lshl_b32 s21, s3, 15
    s_lshl_b32 s22, s17, 7
    s_add_u32 s21, s21, s22
    s_lshl_b32 s22, s3, 12           ; lds dst of this wave within slot
    s_mov_b32 s23, 0                 ; issue slot offset
    s_mov_b32 s24, 4                 ; stages to issue
    s_waitcnt lgkmcnt(0)
    s_mov_b32 s12, s10
    s_mov_b32 s13, s11
    s_mov_b32 s14, 2097152
    s_mov_b32 s15, 0x20000
    s_mov_b32 s10, %d
    s_mov_b32 s11, 0x20000
    """ % (WS_USED, HP, WBYTES))
    def issue_list():
        L = ["s_add_u32 m0, s23, s22\ns_add_u32 s23, s23, %d" % SLOT2]
        for i in range(4): L.append("buffer_load_dwordx4 v3, s[4:7], s20 offen offset:%d lds" % (i*1024))
        L.append("s_add_u32 m0, m0, 16384\ns_add_u32 s20, s20, 8192")
        for i in range(4): L.append("buffer_load_dwordx4 v%d, s[8:11], s21 offen offset:%d lds" % (4+i, i*1024))
        L.append("s_add_u32 s21, s21, 131072\ns_cmp_eq_u32 s23, %d\ns_cselect_b32 s23, 0, s23" % (5*SLOT2))
        return L
    a.label("g2_pro")
    for l in issue_list(): a.e(l)
    a.e("""
    s_sub_u32 s24, s24, 1
    s_cmp_lg_u32 s24, 0
    s_cbranch_scc1 g2_pro
    ; epilogue operands: x1T[ch][tok0+16hh..], rs2
    v_and_b32 v10, 31, v2
    v_lshrrev_b32 v11, 5, v2         ; hh
    v_lshlrev_b32 v14, 12, v10
    v_lshl_add_u32 v14, v11, 5, v14  ; ch*4096 + hh*32
    s_lshl_b32 s26, s17, 1
    s_add_u32 s26, s26, s19
    s_lshl_b32 s26, s26, 17          ; ch0*4096
    s_lshl_b32 s27, s16, 1
    s_add_u32 s27, s27, s18          ; token block of 32
    s_lshl_b32 s28, s27, 6
    s_add_u32 s26, s26, s28          ; offset in X*T
    s_add_u32 s28, s26, %d
    v_lshlrev_b32 v15, 6, v11
    s_lshl_b32 s29, s27, 7
    s_add_u32 s29, s29, %d
    buffer_load_dwordx4 v[112:115], v14, s[4:7], s28 offen
    buffer_load_dwordx4 v[116:119], v14, s[4:7], s28 offen offset:16
    buffer_load_dwordx4 v[120:123], v15, s[4:7], s29 offen
    buffer_load_dwordx4 v[124:127], v15, s[4:7], s29 offen offset:16
    buffer_load_dwordx4 v[128:131], v15, s[4:7], s29 offen offset:32
    buffer_load_dwordx4 v[132:135], v15, s[4:7], s29 offen offset:48
    ; A read base: th*8192 + (hk*32 + pi(rho))*16 ; pi = 16*bit2 + 4*(rho>>3) + (rho&3)
    v_bfe_u32 v12, v2, 2, 1
    v_lshlrev_b32 v8, 9, v11
    v_lshl_add_u32 v8, v12, 8, v8
    v_bfe_u32 v12, v2, 3, 2
    v_lshl_add_u32 v8, v12, 6, v8
    v_and_b32 v12, 3, v2
    v_lshl_add_u32 v8, v12, 4, v8
    s_lshl_b32 s30, s18, 13
    v_add_u32 v8, s30, v8
    ; B read base: 16384 + (4hh + r)*128 + ((chh ^ (r>>1))*64) + (g&1)*32 + c*8
    v_bfe_u32 v13, v2, 2, 2
    v_lshl_add_u32 v9, v11, 2, v13
    v_lshlrev_b32 v9, 7, v9
    v_lshrrev_b32 v13, 1, v13
    v_xor_b32 v13, s19, v13
    v_lshl_add_u32 v9, v13, 6, v9
    v_bfe_u32 v13, v2, 4, 1
    v_lshl_add_u32 v9, v13, 5, v9
    v_lshl_add_u32 v9, v12, 3, v9
    v_add_u32 v9, 16384, v9
    s_mov_b32 s25, 0                 ; read slot offset
    s_mov_b32 s24, 0                 ; stage
    """ % (XB, RS2))
    for i in range(16): a.e("v_mov_b32 v%d, 0" % (ACC+i))
    def rd(ks):
        f = FR + 8*ks
        return ["ds_read_b128 v[%d:%d], v16 offset:%d" % (f, f+3, ks*1024),
                "ds_read_b64_tr_b16 v[%d:%d], v17 offset:%d" % (f+4, f+5, ks*2048),
                "ds_read_b64_tr_b16 v[%d:%d], v17 offset:%d" % (f+6, f+7, ks*2048+1024)]
    def mf(ks):
        f = FR + 8*ks
        a.e("v_mfma_f32_32x32x16_bf16 v[%d:%d], v[%d:%d], v[%d:%d], v[%d:%d]" % (ACC, ACC+15, f, f+3, f+4, f+7, ACC, ACC+15))
    def stage(nks, dma):
        a.e("""
        v_add_u32 v16, s25, v8
        v_add_u32 v17, s25, v9
        s_add_u32 s25, s25, %d
        s_cmp_eq_u32 s25, %d
        s_cselect_b32 s25, 0, s25
        s_barrier
        """ % (SLOT2, 5*SLOT2))
        for ks in range(4):
            for r in rd(ks): a.e(r)
        if dma:
            for l in issue_list(): a.e(l)
        for ks in range(nks):
            if ks + 4 < nks:
                for r in rd(ks+4): a.e(r)
                a.e("s_waitcnt lgkmcnt(12)")
            else: a.e("s_waitcnt lgkmcnt(%d)" % (3*(nks-1-ks)))
            mf(ks)
    a.e("s_waitcnt vmcnt(30)\ns_branch g2_l1")
    a.label("g2_loop")
    a.e("s_cmp_lt_u32 s24, 4\ns_cbranch_scc1 g2_l0\ns_waitcnt vmcnt(24)\ng2_l0:\ns_waitcnt vmcnt(30)\ng2_l1:")
    stage(8, True)
    a.e("s_add_u32 s24, s24, 1\ns_cmp_lt_u32 s24, 7\ns_cbranch_scc1 g2_loop")
    a.e("s_waitcnt vmcnt(24)\ns_branch g2_t1")
    a.label("g2_tail")
    a.e("s_cmp_eq_u32 s24, 8\ns_cbranch_scc1 g2_t0\ns_waitcnt vmcnt(8)\ng2_t0:\ns_waitcnt vmcnt(16)\ng2_t1:")
    stage(8, False)
    a.e("s_add_u32 s24, s24, 1\ns_cmp_lt_u32 s24, 10\ns_cbranch_scc1 g2_tail")
    for i in range(8):
        a.e("v_lshlrev_b32 v%d, 16, v%d\nv_and_b32 v%d, 0xffff0000, v%d" % (136+2*i, 112+i, 137+2*i, 112+i))
    a.e("""
    ; transpose addrs: write v18 = T + ch*64 + hh*32 ; read v19 = T + (16hh + r)*64 + (g&1)*32 + c*8
    s_lshl_b32 s30, s3, 11
    s_add_u32 s30, s30, %d
    v_lshlrev_b32 v18, 6, v10
    v_lshl_add_u32 v18, v11, 5, v18
    v_add_u32 v18, s30, v18
    v_bfe_u32 v19, v2, 2, 2
    v_lshl_add_u32 v19, v11, 4, v19
    v_lshlrev_b32 v19, 6, v19
    v_lshl_add_u32 v19, v13, 5, v19
    v_lshl_add_u32 v19, v12, 3, v19
    v_add_u32 v19, s30, v19
    s_waitcnt vmcnt(0)
    """ % SLOT2)
    stage(6, False)
    for i in range(8):
        a.e("v_pk_fma_f32 v[%d:%d], v[%d:%d], v[%d:%d], v[%d:%d]" % (ACC+2*i, ACC+2*i+1, ACC+2*i, ACC+2*i+1, 120+2*i, 121+2*i, 136+2*i, 137+2*i))
    for i in range(8):
        a.e("v_cvt_pk_bf16_f32 v%d, v%d, v%d" % (48+i, ACC+2*i, ACC+2*i+1))
    a.e("""
    ds_write_b128 v18, v[48:51]
    ds_write_b128 v18, v[52:55] offset:16
    s_cmp_eq_u32 s40, 1
    s_cbranch_scc1 g2_fin
    s_add_u32 s28, s26, %d
    buffer_store_dwordx4 v[48:51], v14, s[4:7], s28 offen
    buffer_store_dwordx4 v[52:55], v14, s[4:7], s28 offen offset:16
    g2_fin:
    s_waitcnt lgkmcnt(0)
    """ % XA)
    for j in range(4): a.e("ds_read_b64_tr_b16 v[%d:%d], v19 offset:%d" % (56+2*j, 57+2*j, j*256))
    a.e("""
    s_cbranch_scc1 g2_out
    s_mov_b32 s31, 0x3f803f80
    v_lshlrev_b32 v20, 3, v10
    v_lshl_add_u32 v20, v11, 2, v20
    s_lshl_b32 s30, s27, 8
    s_add_u32 s30, s30, %d
    s_waitcnt lgkmcnt(0)
    """ % ST)
    for i in range(8):
        a.e("v_dot2_f32_bf16 v22, v%d, s31, %s" % (56+i, "v22" if i else "0"))
        a.e("v_dot2_f32_bf16 v23, v%d, v%d, %s" % (56+i, 56+i, "v23" if i else "0"))
    a.e("""
    v_permlane32_swap_b32 v22, v23
    v_add_f32 v22, v22, v23
    buffer_atomic_add_f32 v22, v20, s[4:7], s30 offen
    g2_end:
    s_endpgm
    g2_out:
    v_lshlrev_b32 v20, 10, v10
    v_lshl_add_u32 v20, v11, 5, v20
    s_lshl_b32 s30, s27, 15
    s_lshl_b32 s31, s17, 7
    s_add_u32 s30, s30, s31
    s_lshl_b32 s31, s19, 6
    s_add_u32 s30, s30, s31
    s_waitcnt lgkmcnt(2)
    buffer_store_dwordx4 v[56:59], v20, s[12:15], s30 offen
    s_waitcnt lgkmcnt(0)
    buffer_store_dwordx4 v[60:63], v20, s[12:15], s30 offen offset:16
    s_endpgm
    """)
    a.desc("gemm2a_kernel", 152)
    a.desc("gemm2b_kernel", 152)
```

```python
from consts import *
def cmul(a, d, x, e, t):
    a.e("v_pk_mul_f32 v[%d:%d], v[%d:%d], v[%d:%d] op_sel:[1,1] op_sel_hi:[1,0]" % (t, t+1, x, x+1, e, e+1))
    a.e("v_pk_fma_f32 v[%d:%d], v[%d:%d], v[%d:%d], v[%d:%d] op_sel:[0,0,0] op_sel_hi:[0,1,1] neg_lo:[0,0,1]" % (d, d+1, x, x+1, e, e+1, t, t+1))
def cexp(a, d, p, va, vw, t):
    if p == 1:
        a.e("v_exp_f32 v%d, v%d" % (t, va)); a.e("v_fract_f32 v%d, v%d" % (t+1, vw))
    else:
        a.e("v_mul_f32 v%d, %s, v%d" % (t, fl(p), va)); a.e("v_mul_f32 v%d, %s, v%d" % (t+1, fl(p), vw))
        a.e("v_exp_f32 v%d, v%d" % (t, t)); a.e("v_fract_f32 v%d, v%d" % (t+1, t+1))
    a.e("v_cos_f32 v%d, v%d" % (d, t+1)); a.e("v_sin_f32 v%d, v%d" % (d+1, t+1))
    a.e("v_pk_mul_f32 v[%d:%d], v[%d:%d], v[%d:%d] op_sel:[0,0] op_sel_hi:[1,0]" % (d, d+1, d, d+1, t, t+1))
def reduce16(a, V):
    for k in range(4):
        a.e("v_permlane32_swap_b32 v%d, v%d" % (V[k][0], V[k][2])); a.e("v_permlane32_swap_b32 v%d, v%d" % (V[k][1], V[k][3]))
    for k in range(4):
        a.e("v_add_f32 v%d, v%d, v%d" % (V[k][0], V[k][0], V[k][2])); a.e("v_add_f32 v%d, v%d, v%d" % (V[k][1], V[k][1], V[k][3]))
    for k in range(4): a.e("v_permlane16_swap_b32 v%d, v%d" % (V[k][0], V[k][1]))
    for k in range(4): a.e("v_add_f32 v%d, v%d, v%d" % (V[k][0], V[k][0], V[k][1]))
    for sh in (8, 4, 2, 1):
        for k in range(4): a.e("v_add_f32_dpp v%d, v%d, v%d row_ror:%d row_mask:0xf bank_mask:0xf" % (V[k][0], V[k][0], V[k][0], sh))

GOFF, HOFF, TOFF, RSTR = 0, 13056, 30464, 544
PREP_LDS = 35840
N_PACK, N_TR, N_ST, N_KG = 88, 64, 64, 512
def gen_prep(a):
    a.begin("prep_kernel")
    a.e("""
    s_load_dwordx16 s[4:19], s[0:1], 0
    s_load_dwordx8 s[20:27], s[0:1], 64
    s_load_dwordx2 s[28:29], s[0:1], 104
    v_lshrrev_b32 v1, 6, v0
    v_and_b32 v2, 63, v0
    s_mov_b32 s30, %d
    s_mov_b32 s31, 0x20000
    v_readfirstlane_b32 s3, v1
    s_cmp_lt_u32 s2, %d
    s_cbranch_scc1 prep_pack
    s_cmp_lt_u32 s2, %d
    s_cbranch_scc1 prep_trans
    s_cmp_lt_u32 s2, %d
    s_cbranch_scc1 prep_stats
    s_cmp_ge_u32 s2, %d
    s_cbranch_scc1 prep_end
    """ % (WS_USED, N_PACK, N_PACK+N_TR, N_PACK+N_TR+N_ST, N_PACK+N_TR+N_ST+N_KG))
    a.e("""
    s_sub_u32 s32, s2, %d
    s_lshr_b32 s33, s32, 4
    s_lshl_b32 s33, s33, 3
    s_and_b32 s34, s32, 7
    s_add_u32 s33, s33, s34
    s_lshl_b32 s33, s33, 1
    s_bfe_u32 s34, s32, 0x10003
    s_add_u32 s33, s33, s34          ; channel d
    v_and_b32 v5, 127, v0
    s_lshl_b32 s34, s33, 8
    v_lshl_add_u32 v3, v5, 1, s34
    s_lshl_b32 s34, s33, 1
    v_mov_b32 v4, s34
    v_lshlrev_b32 v5, 2, v5          ; lds write addr
    s_lshl_b32 s34, s32, 12
    v_lshl_add_u32 v6, v0, 4, s34
    s_waitcnt lgkmcnt(0)
    global_load_short_d16_hi v14, v4, s[14:15]
    global_load_short_d16_hi v10, v3, s[6:7]
    global_load_short_d16_hi v11, v3, s[8:9]
    global_load_short_d16_hi v12, v3, s[10:11]
    global_load_short_d16_hi v13, v3, s[12:13]
    s_mov_b32 s26, %d
    s_mov_b32 s27, 0x20000
    buffer_load_dwordx4 v[100:103], v6, s[24:27], 0 offen
    """ % (N_PACK+N_TR+N_ST, WBYTES))
    a.e("v_lshlrev_b32 v7, 3, v0\nv_sub_u32 v7, 2047, v7")
    for e in range(9):
        if e: a.e("v_add_u32 v%d, %d, v7" % (20+e, -e))
        a.e("v_cvt_f32_i32 v%d, v%d" % (20+e, 20+e if e else 7))
    for e in range(0, 9, 2):
        a.e("v_cvt_pk_bf16_f32 v%d, v%d, v%d" % (30+e//2, 20+e, 20+min(e+1, 8)))
    for e in range(9):
        if e % 2 == 0: a.e("v_lshlrev_b32 v%d, 16, v%d" % (20+e, 30+e//2))
        else: a.e("v_and_b32 v%d, 0xffff0000, v%d" % (20+e, 30+e//2))
    for e in range(9): a.e("v_cvt_u32_f32 v%d, v%d" % (20+e, 20+e))
    for e in range(9): a.e("v_lshrrev_b32 v%d, 6, v%d" % (40+e, 20+e))
    for e in range(9): a.e("v_lshl_add_u32 v%d, v%d, 1, v%d" % (20+e, 40+e, 20+e))
    for e in range(9): a.e("v_lshlrev_b32 v%d, 1, v%d" % (20+e, 20+e))
    a.e("""
    s_and_b32 s35, s3, 1             ; mt
    s_lshr_b32 s36, s3, 1            ; nt
    v_lshrrev_b32 v30, 4, v2         ; q
    v_and_b32 v31, 15, v2            ; col
    s_cmp_eq_u32 s35, 0
    s_cselect_b32 s37, 0x10000, 0
    s_cselect_b32 s38, 0x10004, 0
    s_cselect_b32 s39, 0, 0x1000204
    s_cselect_b32 s40, 0, 0x1000600
    s_or_b32 s37, s37, s39
    s_or_b32 s38, s38, s40
    v_mov_b32 v33, s37
    s_mov_b32 exec_lo, 0xffff0000
    v_mov_b32 v33, s38
    s_mov_b32 exec_lo, 0
    v_mov_b32 v33, 0x20100
    s_mov_b32 exec_hi, 0xffff0000
    v_mov_b32 v33, 0x1000200
    s_mov_b64 exec, -1
    """)
    a.e("""
    s_lshl_b32 s37, s36, 7
    v_and_b32 v34, 0xffff, v33
    v_lshrrev_b32 v33, 16, v33       ; step
    v_lshl_add_u32 v34, v31, 3, v34
    v_add_u32 v16, s37, v34
    v_add_u32 v17, v16, v33
    v_add_u32 v18, v17, v33
    v_add_u32 v19, v18, v33
    """)
    for r in range(4): a.e("v_lshrrev_b32 v%d, 6, v%d" % (40+r, 16+r))
    for r in range(4): a.e("v_lshl_add_u32 v%d, v%d, 1, v%d" % (16+r, 40+r, 16+r))
    for r in range(4): a.e("v_lshlrev_b32 v%d, 1, v%d" % (16+r, 16+r))
    a.e("""
    v_mul_u32_u24 v34, %d, v31
    v_lshl_add_u32 v34, v30, 4, v34
    s_mul_i32 s37, s35, %d
    s_mul_i32 s38, s36, %d
    v_add_u32 v8, s37, v34
    v_add_u32 v9, s38, v34
    s_waitcnt vmcnt(1)
    v_mul_f32 v14, %s, v14
    v_mul_f32 v10, %s, v10
    v_exp_f32 v14, v14
    v_exp_f32 v10, v10
    v_cvt_pk_bf16_f32 v15, v14, v10
    v_lshlrev_b32 v14, 16, v15
    v_and_b32 v10, 0xffff0000, v15
    v_mul_f32 v10, v10, v14
    v_mul_f32 v11, v11, v14
    v_mul_f32 v10, %s, v10
    v_mul_f32 v11, %s, v11
    s_cmp_ge_u32 s3, 2
    s_cbranch_scc1 prep_kh
    """ % (RSTR, 16*RSTR, 16*RSTR, fl(LOG2E), fl(LOG2E), fl(-LOG2E), fl(INV2PI)))
    cexp(a, 30, 1, 10, 11, 56); cexp(a, 32, 256, 10, 11, 58)
    a.e("v_add_f32 v14, v14, v14\nv_mul_f32 v34, v12, v14\nv_mul_f32 v35, v13, v14")
    cnt = [0]
    def put(reg, row, off, neg):
        c = 64 + (cnt[0] % 4); cnt[0] += 1
        a.e("v_cvt_pk_bf16_f32 v%d, v%d, %sv%d" % (c, reg, "-" if neg else "", reg+1))
        a.e("ds_write_b32 v5, v%d offset:%d" % (c, off + row*RSTR))
    put(34, 0, GOFF, True)
    rowsB = [8, 12, 13, 14, 15, 20, 21, 22]
    prevB = 34
    for i in range(8):
        if i < 7:
            cmul(a, 36+2*i, 34+2*i, 30, 56)
        cur = 50 + 2*(i % 2)
        cmul(a, cur, prevB, 32, 58)
        if i < 7: put(36+2*i, i+1, GOFF, True)
        put(cur, rowsB[i], GOFF, True); prevB = cur
    cmul(a, 50, 38, 32, 56); cmul(a, 52, 42, 32, 58); cmul(a, 54, 46, 32, 56)
    put(50, 9, GOFF, True); put(52, 10, GOFF, True)
    cmul(a, 50, 52, 32, 58); put(54, 11, GOFF, True); put(50, 16, GOFF, True)
    cmul(a, 52, 50, 32, 56); put(52, 17, GOFF, True)
    a.e("s_branch prep_kmm")
    a.label("prep_kh")
    cexp(a, 34, 8, 10, 11, 56)
    a.e("v_mov_b32 v64, 0x3f80\nds_write_b32 v5, v64 offset:%d" % HOFF)
    cnt[0] = 1
    cmul(a, 30, 34, 34, 58)
    put(34, 1, HOFF, False); put(30, 2, HOFF, False)
    prev = {1: 34, 0: 30}
    for j in range(3, 32):
        par = j & 1
        cur = (36 if par else 40) + 2*((j >> 1) & 1)
        cmul(a, cur, prev[par], 30, 56 + 2*par)
        put(cur, j, HOFF, False); prev[par] = cur
    a.label("prep_kmm")
    a.e("s_waitcnt lgkmcnt(0)\ns_barrier")
    for ks in range(8):
        a.e("ds_read_b128 v[%d:%d], v8 offset:%d" % (30+8*ks, 33+8*ks, GOFF + 64*ks))
        a.e("ds_read_b128 v[%d:%d], v9 offset:%d" % (34+8*ks, 37+8*ks, HOFF + 64*ks))
    for ks in range(8):
        a.e("s_waitcnt lgkmcnt(%d)" % (14 - 2*ks))
        a.e("v_mfma_f32_16x16x32_bf16 v[10:13], v[%d:%d], v[%d:%d], %s" % (30+8*ks, 33+8*ks, 34+8*ks, 37+8*ks, "v[10:13]" if ks else "0"))
    a.e("""
    s_cmp_eq_u32 s35, 0
    s_cselect_b32 exec_hi, -1, 0
    v_cvt_pk_bf16_f32 v10, v10, v11
    v_cvt_pk_bf16_f32 v12, v12, v13
    ds_write_b16 v16, v10 offset:%d
    ds_write_b16_d16_hi v17, v10 offset:%d
    ds_write_b16 v18, v12 offset:%d
    ds_write_b16_d16_hi v19, v12 offset:%d
    s_mov_b32 exec_hi, -1
    s_waitcnt lgkmcnt(0)
    s_barrier
    """ % (TOFF, TOFF, TOFF, TOFF))
    for e in range(9):
        a.e("ds_read_u16 v%d, v%d offset:%d" % (44+e, 20+e, TOFF))
    a.e("""
    s_lshl_b32 s34, s33, 13
    s_add_u32 s34, s34, %d
    v_lshlrev_b32 v6, 4, v0
    v_cmp_ne_u32 vcc, 255, v0
    s_add_u32 s35, s34, 4096
    s_waitcnt lgkmcnt(1)
    v_lshl_or_b32 v32, v45, 16, v44
    v_lshl_or_b32 v33, v47, 16, v46
    v_lshl_or_b32 v34, v49, 16, v48
    v_lshl_or_b32 v35, v51, 16, v50
    buffer_store_dwordx4 v[32:35], v6, s[28:31], s34 offen
    s_waitcnt lgkmcnt(0)
    v_cndmask_b32 v52, 0, v52, vcc
    v_lshl_or_b32 v40, v46, 16, v45
    v_lshl_or_b32 v41, v48, 16, v47
    v_lshl_or_b32 v42, v50, 16, v49
    v_lshl_or_b32 v43, v52, 16, v51
    buffer_store_dwordx4 v[40:43], v6, s[28:31], s35 offen
    prep_end:
    s_endpgm
    """ % KR)
    a.label("prep_pack")
    a.e("""
    s_and_b32 s32, s2, 7
    s_mul_i32 s32, s32, 11
    s_lshr_b32 s33, s2, 3
    s_add_u32 s32, s32, s33          ; slab 0..87
    s_cmp_ge_u32 s32, 86
    s_cbranch_scc1 prep_end
    s_cmp_ge_u32 s32, 43
    s_cselect_b32 s33, 1, 0          ; mat
    s_mul_i32 s34, s33, 43
    s_sub_u32 s32, s32, s34          ; s
    v_lshrrev_b32 v3, 2, v2
    s_lshl_b32 s34, s3, 7
    v_add_u32 v3, s34, v3
    v_mul_u32_u24 v3, 2752, v3
    v_and_b32 v4, 3, v2
    v_lshl_add_u32 v3, v4, 4, v3
    s_lshl_b32 s34, s32, 6
    v_add_u32 v3, s34, v3
    s_lshl_b32 s40, s3, 13
    s_mov_b32 s38, %d
    s_mov_b32 s39, 0x20000
    s_mov_b32 s41, 0
    s_mov_b32 m0, s40
    s_cmp_eq_u32 s33, 0
    s_waitcnt lgkmcnt(0)
    s_cselect_b32 s36, s20, s22
    s_cselect_b32 s37, s21, s23
    """ % WBYTES)
    for i in range(8):
        a.e("buffer_load_dwordx4 v3, s[36:39], s41 offen lds")
        if i < 7: a.e("s_add_u32 m0, m0, 1024\ns_add_u32 s41, s41, %d" % (16*2752))
    a.e("""
    v_lshrrev_b32 v5, 5, v2          ; hh
    v_bfe_u32 v6, v2, 2, 2           ; r
    v_lshl_add_u32 v6, v5, 3, v6     ; row
    v_lshlrev_b32 v6, 6, v6
    v_bfe_u32 v7, v2, 4, 1
    v_lshl_add_u32 v6, v7, 5, v6
    v_lshl_add_u32 v6, v4, 3, v6
    v_add_u32 v6, s40, v6            ; tr read addr
    ; store addr
    v_lshlrev_b32 v8, 15, v7         ; (col>>4)*32768
    v_lshl_add_u32 v8, v5, 9, v8
    v_and_b32 v9, 15, v2
    v_lshl_add_u32 v8, v9, 4, v8
    s_lshl_b32 s34, s32, 16
    s_lshl_b32 s35, s33, 8
    s_add_u32 s34, s34, s35
    s_add_u32 s34, s34, s40
    s_add_u32 s34, s34, %d
    s_add_u32 s35, s34, 4096
    v_and_b32 v9, 31, v2
    v_lshlrev_b32 v9, 2, v9
    s_lshl_b32 s42, s3, 7
    v_add_u32 v10, s42, v9
    s_mov_b32 s43, 0x3f803f80
    """ % W1P)
    for ks in range(8):
        a.e("s_waitcnt vmcnt(%d)" % (7-ks))
        for j in range(2):
            a.e("ds_read_b64_tr_b16 v[%d:%d], v6 offset:%d" % (32+4*ks+2*j, 33+4*ks+2*j, ks*1024 + j*256))
    for i in range(32):
        if i % 4 == 0: a.e("s_waitcnt lgkmcnt(%d)" % (14 - i//2))
        a.e("v_dot2_f32_bf16 v%d, v%d, s43, %s" % (12 + (i & 1), 32+i, "v%d" % (12 + (i & 1)) if i > 1 else "0"))
    a.e("""
    v_add_f32 v12, v12, v13
    v_mov_b32 v13, v12
    v_permlane32_swap_b32 v12, v13
    v_add_f32 v12, v12, v13
    ds_write_b32 v10, v12 offset:32768
    s_waitcnt lgkmcnt(0)
    s_barrier
    ds_read_b32 v12, v9 offset:32768
    ds_read_b32 v13, v9 offset:32896
    ds_read_b32 v14, v9 offset:33024
    ds_read_b32 v15, v9 offset:33152
    """)
    for i in range(32):
        a.e("v_and_b32 v%d, 0xffff0000, v%d" % (65+2*i, 32+i))
        a.e("v_lshlrev_b32 v%d, 16, v%d" % (64+2*i, 32+i))
    a.e("""
    s_waitcnt lgkmcnt(0)
    v_add_f32 v12, v12, v13
    v_add_f32 v14, v14, v15
    v_add_f32 v12, v12, v14
    v_mul_f32 v12, %s, v12
    """ % fl(-1.0/512))
    for ks in range(8):
        for i in range(4*ks, 4*ks+4):
            a.e("v_pk_add_f32 v[%d:%d], v[%d:%d], v[12:13] op_sel_hi:[1,0]" % (64+2*i, 65+2*i, 64+2*i, 65+2*i))
        for i in range(4*ks, 4*ks+4):
            a.e("v_cvt_pk_bf16_f32 v%d, v%d, v%d" % (32+i, 64+2*i, 65+2*i))
        a.e("buffer_store_dwordx4 v[%d:%d], v8, s[28:31], %s offen offset:%d" % (32+4*ks, 35+4*ks, "s34" if ks < 4 else "s35", (ks & 3)*1024))
    a.e("s_endpgm")
    a.label("prep_trans")
    a.e("""
    s_sub_u32 s32, s2, %d
    s_lshl_b32 s32, s32, 2
    s_add_u32 s32, s32, s3
    s_lshr_b32 s33, s32, 3           ; token block
    s_and_b32 s34, s32, 7            ; channel block
    v_and_b32 v3, 7, v2              ; o
    v_lshrrev_b32 v4, 3, v2          ; c
    v_lshlrev_b32 v5, 13, v3
    v_lshl_add_u32 v5, v4, 4, v5
    s_lshl_b32 s35, s33, 16
    s_lshl_b32 s36, s34, 7
    s_add_u32 s35, s35, s36
    s_add_u32 s36, s35, 4096
    v_lshlrev_b32 v6, 15, v4
    v_lshl_add_u32 v6, v3, 4, v6
    s_lshl_b32 s37, s34, 18
    s_lshl_b32 s38, s33, 7
    s_add_u32 s37, s37, s38
    s_add_u32 s37, s37, %d
    s_mov_b32 s40, 0x05040100
    s_mov_b32 s41, 0x07060302
    s_waitcnt lgkmcnt(0)
    s_mov_b32 s6, 2097152
    s_mov_b32 s7, 0x20000
    """ % (N_PACK, XA))
    for i in range(8):
        a.e("buffer_load_dwordx4 v[%d:%d], v5, s[4:7], %s offen offset:%d" % (8+4*i, 11+4*i, "s35" if i < 4 else "s36", (i & 3)*1024))
    a.e("s_waitcnt vmcnt(0)")
    for j in range(8):
        for p in range(4):
            a.e("v_perm_b32 v%d, v%d, v%d, s%d" % (40+4*j+p, 8+4*(2*p+1)+j//2, 8+4*(2*p)+j//2, 40 + (j & 1)))
        a.e("buffer_store_dwordx4 v[%d:%d], v6, s[28:31], s37 offen" % (40+4*j, 43+4*j))
        if j < 7: a.e("s_add_u32 s37, s37, 4096")
    a.e("s_endpgm")
    a.label("prep_stats")
    a.e("""
    s_sub_u32 s32, s2, %d
    s_lshl_b32 s33, s32, 2
    s_add_u32 s33, s33, s3           ; token octet
    v_lshlrev_b32 v5, 4, v2
    s_lshl_b32 s35, s33, 13
    s_add_u32 s36, s35, 4096
    s_mov_b32 s43, 0x3f803f80
    s_lshl_b32 s37, s33, 6
    s_add_u32 s37, s37, %d
    v_and_b32 v6, 15, v2
    v_cmp_eq_u32 vcc, 0, v6
    s_waitcnt lgkmcnt(0)
    s_mov_b32 s6, 2097152
    s_mov_b32 s7, 0x20000
    """ % (N_PACK+N_TR, ST))
    for i in range(8):
        a.e("buffer_load_dwordx4 v[%d:%d], v5, s[4:7], %s offen offset:%d" % (8+4*i, 11+4*i, "s35" if i < 4 else "s36", (i & 3)*1024))
    V = [[40 + 4*rho + k for rho in range(4)] for k in range(4)]
    for i in range(8):
        a.e("s_waitcnt vmcnt(%d)" % (7-i))
        rs, rq = V[2*(i & 1)][i >> 1], V[2*(i & 1)+1][i >> 1]
        for d in range(4):
            a.e("v_dot2_f32_bf16 v%d, v%d, s43, %s" % (rs, 8+4*i+d, "v%d" % rs if d else "0"))
            a.e("v_dot2_f32_bf16 v%d, v%d, v%d, %s" % (rq, 8+4*i+d, 8+4*i+d, "v%d" % rq if d else "0"))
    reduce16(a, V)
    a.e("""
    s_and_saveexec_b64 s[44:45], vcc
    buffer_store_dwordx4 v[40:43], v2, s[28:31], s37 offen
    s_endpgm
    """)
    a.desc("prep_kernel", 128)
```

```python
import sys
from asmlib import Asm
from consts import *
import prep, conv, gemm1, gemm2
a = Asm()
a.launch("prep_kernel", 728, 256, prep.PREP_LDS)
a.launch("conv_kernel", 256, 512, conv.CONV_LDS)
a.launch("gemm1_kernel", 256, 512, gemm1.G1_LDS)
a.launch("gemm2a_kernel", 256, 256, gemm2.G2_LDS)
a.launch("conv_kernel", 256, 512, conv.CONV_LDS)
a.launch("gemm1_kernel", 256, 512, gemm1.G1_LDS)
a.launch("gemm2b_kernel", 256, 256, gemm2.G2_LDS)
prep.gen_prep(a)
conv.gen_conv(a)
gemm1.gen_gemm1(a)
gemm2.gen_gemm2(a)
open(sys.argv[1], "w").write(a.out())
print("pads", a.npad)
```
